```python
import torch

def _softmax(x, axis=-1):
    return torch.softmax(x, dim=axis)
def _gelu(x):
    return torch.nn.functional.gelu(x, approximate="tanh")
def _silu(x):
    return torch.nn.functional.silu(x)
def _sigmoid(x):
    return torch.sigmoid(x)
def _layernorm(x, axis=-1, eps=1e-5):
    m = x.mean(dim=axis, keepdim=True)
    v = x.var(dim=axis, keepdim=True, unbiased=False)
    return (x - m) / torch.sqrt(v + eps)
def _scatter_add(tgt, idx, src, axis=0):
    return tgt.clone().index_add_(axis, idx, src)
def _segment_sum(src, seg, n):
    out = torch.zeros((n,) + src.shape[1:], dtype=src.dtype)
    return out.index_add_(0, seg, src)
def _pad(x, pw):
    flat = tuple(v for pair in reversed(pw) for v in pair)
    return torch.nn.functional.pad(x, flat)

kernel_name = 'concat_heads__gqa_block_cached__mha_block_cached__near_ridge'

def setup_inputs():

    _w = (lambda a: (lambda t: t.to(torch.bfloat16) if t.is_floating_point() else t)(torch.as_tensor(a)))
    def _A_setup():
        B, Sq, D = 16, 32, 1024
        Hq, Hkv, Sk, Dh = 32, 4, 512, 128
        assert Hq % Hkv == 0, (Hq, Hkv)
        return {
            "x": _w((lambda *s: torch.randn(*s, dtype=torch.bfloat16) * 0.8)(B, Sq, D)),
            "k_cache": _w((lambda *s: torch.randn(*s, dtype=torch.bfloat16) * 0.8)(B, Hkv, Sk, Dh)),
            "v_cache": _w((lambda *s: torch.randn(*s, dtype=torch.bfloat16) * 0.05)(B, Hkv, Sk, Dh)),
            "wq": _w((lambda *s: torch.randn(*s, dtype=torch.bfloat16) * 0.8)(D, Hq * Dh) * (D ** -0.5)),
            "wo": _w((lambda *s: torch.randn(*s, dtype=torch.bfloat16) * 0.05)(Hq * Dh, D) * ((Hq * Dh) ** -0.5)),
        }
    _A_in = _A_setup()

    def _B_setup():
        B, Sq, D = 16, 32, 1024
        H, Sk, Dh = 32, 512, 128
        return {
            "x": _w((lambda *s: torch.randn(*s, dtype=torch.bfloat16) * 0.8)(B, Sq, D)),
            "k_cache": _w((lambda *s: torch.randn(*s, dtype=torch.bfloat16) * 0.8)(B, H, Sk, Dh)),
            "v_cache": _w((lambda *s: torch.randn(*s, dtype=torch.bfloat16) * 0.05)(B, H, Sk, Dh)),
            "wq": _w((lambda *s: torch.randn(*s, dtype=torch.bfloat16) * 0.8)(D, H * Dh) * (D ** -0.5)),
            "wo": _w((lambda *s: torch.randn(*s, dtype=torch.bfloat16) * 0.05)(H * Dh, D) * ((H * Dh) ** -0.5)),
        }
    _B_in = _B_setup()

    return {
        "A_x": _A_in["x"],
        "A_k_cache": _A_in["k_cache"],
        "A_v_cache": _A_in["v_cache"],
        "A_wq": _A_in["wq"],
        "A_wo": _A_in["wo"],
        "B_x": _B_in["x"],
        "B_k_cache": _B_in["k_cache"],
        "B_v_cache": _B_in["v_cache"],
        "B_wq": _B_in["wq"],
        "B_wo": _B_in["wo"],
    }

def reference(A_x, A_k_cache, A_v_cache, A_wq, A_wo, B_x, B_k_cache, B_v_cache, B_wq, B_wo):
    def _A_ref(x, k_cache, v_cache, wq, wo):
        B, Sq, D = x.shape
        Hq, Dh = 32, 128
        Hkv = k_cache.shape[1]
        rep = Hq // Hkv
        q = (lambda x, *d: x.permute(*d))((x @ wq).reshape(B, Sq, Hq, Dh), 0, 2, 1, 3)
        k = (lambda x, n, axis: torch.repeat_interleave(x, n, dim=axis))(k_cache, rep, axis=1)
        v = (lambda x, n, axis: torch.repeat_interleave(x, n, dim=axis))(v_cache, rep, axis=1)
        scores = torch.einsum("bhqd,bhkd->bhqk", q, k) * (Dh ** -0.5)
        p = _softmax(scores, axis=-1)
        o = torch.einsum("bhqk,bhkd->bhqd", p, v)
        return (lambda x, *d: x.permute(*d))(o, 0, 2, 1, 3).reshape(B, Sq, Hq * Dh) @ wo

    def _B_ref(x, k_cache, v_cache, wq, wo):
        B, Sq, D = x.shape
        H, Dh = 32, 128
        q = (lambda x, *d: x.permute(*d))((x @ wq).reshape(B, Sq, H, Dh), 0, 2, 1, 3)
        scores = torch.einsum("bhqd,bhkd->bhqk", q, k_cache) * (Dh ** -0.5)
        p = _softmax(scores, axis=-1)
        o = torch.einsum("bhqk,bhkd->bhqd", p, v_cache)
        return (lambda x, *d: x.permute(*d))(o, 0, 2, 1, 3).reshape(B, Sq, H * Dh) @ wo

    a = _A_ref(A_x, A_k_cache, A_v_cache, A_wq, A_wo)
    b = _B_ref(B_x, B_k_cache, B_v_cache, B_wq, B_wo)
    return torch.concatenate([a, b], axis=-1)
```

```python
class Asm:
    def __init__(self):
        self.lines = []
        self._lab = 0
    def __call__(self, s, *a):
        for l in s.strip("\n").split("\n"):
            self.lines.append("    " + l.strip())
    def raw(self, s):
        self.lines.append(s)
    def label(self, name):
        self.lines.append(name + ":")
    def newlabel(self, pfx="L"):
        self._lab += 1
        return f"{pfx}_{self._lab}"
    def comment(self, s):
        self.lines.append("    ; " + s)
    def text(self):
        return "\n".join(self.lines) + "\n"

def kernel_header(a, name):
    a.raw(f".globl {name}")
    a.raw(".p2align 8")
    a.raw(f".type {name},@function")
    a.raw(f"{name}:")

def kernel_desc(name, vgpr=256, sgpr=102, accum=256):
    return f""".amdhsa_kernel {name}
  .amdhsa_next_free_vgpr {vgpr}
  .amdhsa_next_free_sgpr {sgpr}
  .amdhsa_accum_offset {accum}
  .amdhsa_group_segment_fixed_size 0
  .amdhsa_kernarg_size 104
  .amdhsa_user_sgpr_count 2
  .amdhsa_user_sgpr_kernarg_segment_ptr 1
  .amdhsa_system_sgpr_workgroup_id_x 1
.end_amdhsa_kernel
"""

def v(i, n=1):
    return f"v{i}" if n == 1 else f"v[{i}:{i+n-1}]"
def ag(i, n=1):
    return f"a{i}" if n == 1 else f"a[{i}:{i+n-1}]"
def s(i, n=1):
    return f"s{i}" if n == 1 else f"s[{i}:{i+n-1}]"
```

```python
import sys, math
from kgen import *

NAME = "concat_heads__gqa_block_cached__mha_block_cached__near_ridge"
SCALE_LOG2E = (128 ** -0.5) * math.log2(math.e)

def f2u(x):
    import struct
    return struct.unpack("<I", struct.pack("<f", x))[0]

class Stream:
    def __init__(self, a, nslots):
        self.a = a
        self.free = list(range(nslots))
        self.queue = []
        self.slot = {}
        self.vm = []
    def push(self, name, emit):
        self.queue.append((name, emit))
    def pump(self):
        while self.free and self.queue:
            name, emit = self.queue.pop(0)
            sl = self.free.pop(0)
            self.slot[name] = sl
            if emit is not None:
                n = emit(sl)
                self.vm += [name] * n
    def other_vm(self, n=1, name="_other"):
        self.vm += [name] * n
    def wait(self, *names):
        last = -1
        for nm in names:
            assert nm in self.slot, f"tile {nm} not issued yet"
            idx = [i for i, x in enumerate(self.vm) if x == nm]
            if idx:
                last = max(last, idx[-1])
        if last < 0:
            return
        n_after = len(self.vm) - 1 - last
        assert n_after <= 63
        self.a(f"s_waitcnt vmcnt({n_after})")
        self.vm = self.vm[last + 1:]
    def release(self, *names):
        for nm in names:
            self.free.append(self.slot.pop(nm))
        self.pump()

SLOT = 8192
WREG = 40960

def load_ptrs(a):
    a("""
    s_load_dwordx16 s[16:31], s[0:1], 0
    s_load_dwordx8 s[32:39], s[0:1], 64
    s_load_dwordx2 s[40:41], s[0:1], 96
    """)

def gen_k1(a, opt):
    NT_KV_B = opt.get("nt_kv", True)
    kernel_header(a, "attn_kernel")
    V_X0, V_X1, V_W, V_K, V_V = 1, 2, 3, 4, 8
    V_XA, V_WA, V_KA, V_VA = 9, 13, 17, 25
    V_EW, V_ER, V_OST = 29, 30, 31
    T0 = 32
    V_Q = 40
    V_O = 72
    V_S = 136
    V_F = 168
    V_P = 232
    V_M, V_L, V_MC = 248, 249, 250
    T1 = 251
    SX, SW, SK, SV, SO = 48, 52, 56, 60, 64
    S_WB, S_XB0, S_XB1, S_WQB, S_T, S_C = 68, 69, 70, 71, 72, 73
    S_ROLE, S_M, S_H, S_BP, S_B = 74, 75, 76, 77, 78

    a(f"""
    s_cmp_ge_u32 s2, 256
    s_cbranch_scc1 L_k1_end
    """)
    load_ptrs(a)
    a(f"""
    v_lshrrev_b32 v{T0}, 6, v0
    v_and_b32 v0, 63, v0
    s_nop 0
    v_readfirstlane_b32 s3, v{T0}
    s_and_b32 s4, s2, 7                    ; xcd
    s_lshr_b32 s5, s2, 3                   ; i
    s_lshr_b32 s{S_ROLE}, s3, 1            ; 0 = B, 1 = A
    s_and_b32 s{S_M}, s3, 1
    s_mul_i32 s{S_WB}, s3, {WREG}
    s_lshl_b32 s6, s4, 2
    s_and_b32 s7, s5, 3
    s_add_u32 s6, s6, s7                   ; hB
    s_lshr_b32 s7, s5, 2                   ; bpB
    s_and_b32 s8, s4, 3
    s_lshl_b32 s8, s8, 3
    s_and_b32 s9, s5, 7
    s_add_u32 s8, s8, s9                   ; hA
    s_lshr_b32 s9, s4, 2
    s_lshl_b32 s9, s9, 2
    s_lshr_b32 s10, s5, 3
    s_add_u32 s9, s9, s10                  ; bpA
    s_cmp_eq_u32 s{S_ROLE}, 0
    s_cselect_b32 s{S_H}, s6, s8
    s_cselect_b32 s{S_BP}, s7, s9
    s_lshl_b32 s{S_B}, s{S_BP}, 1
    s_add_u32 s{S_B}, s{S_B}, s{S_M}       ; b = 2*bp + m
    s_lshl_b32 s6, s{S_B}, 5
    s_add_u32 s6, s6, s{S_H}
    s_lshl_b32 s7, s{S_B}, 2
    s_lshr_b32 s8, s{S_H}, 3
    s_add_u32 s7, s7, s8
    s_cmp_eq_u32 s{S_ROLE}, 0
    s_cselect_b32 s6, s6, s7
    s_lshl_b32 s6, s6, 17
    s_waitcnt lgkmcnt(0)
    s_cmp_eq_u32 s{S_ROLE}, 0
    s_cselect_b32 s{SX}, s26, s16
    s_cselect_b32 s{SX+1}, s27, s17
    s_cselect_b32 s{SW}, s32, s22
    s_cselect_b32 s{SW+1}, s33, s23
    s_cselect_b32 s{SK}, s28, s18
    s_cselect_b32 s{SK+1}, s29, s19
    s_cselect_b32 s{SV}, s30, s20
    s_cselect_b32 s{SV+1}, s31, s21
    s_add_u32 s{SK}, s{SK}, s6
    s_addc_u32 s{SK+1}, s{SK+1}, 0
    s_add_u32 s{SV}, s{SV}, s6
    s_addc_u32 s{SV+1}, s{SV+1}, 0
    s_mov_b32 s{SX+2}, 0x100000
    s_mov_b32 s{SX+3}, 0x00020000
    s_mov_b32 s{SW+2}, 0x800000
    s_mov_b32 s{SW+3}, 0x00020000
    s_mov_b32 s{SK+2}, 0x20000
    s_mov_b32 s{SK+3}, 0x00020000
    s_mov_b32 s{SV+2}, 0x20000
    s_mov_b32 s{SV+3}, 0x00020000
    s_cmp_eq_u32 s{S_ROLE}, 0
    s_cselect_b32 s7, 0x400000, 0
    s_add_u32 s{SO}, s40, s7
    s_addc_u32 s{SO+1}, s41, 0
    s_mov_b32 s{SO+2}, 0x400000
    s_mov_b32 s{SO+3}, 0x00020000
    s_lshl_b32 s7, s{S_BP}, 17
    s_lshl_b32 s8, s{S_M}, 10
    s_add_u32 s7, s7, s8
    s_lshl_b32 s8, s{S_M}, 16
    s_add_u32 s{S_XB0}, s7, s8
    s_xor_b32 s8, s8, 0x10000
    s_add_u32 s{S_XB1}, s7, s8
    s_lshl_b32 s7, s{S_M}, 22
    s_lshl_b32 s8, s{S_H}, 8
    s_add_u32 s{S_WQB}, s7, s8
    s_mov_b32 s{S_C}, {f2u(SCALE_LOG2E):#x}
    """)
    t0, t1, t2, t3, t4, t5 = T0, T0+1, T0+2, T0+3, T0+4, T0+5
    a(f"""
    v_lshrrev_b32 v{t0}, 4, v0             ; l16
    v_and_b32 v{t1}, 15, v0                ; c16
    v_lshrrev_b32 v{t2}, 3, v0             ; l8
    v_and_b32 v{t3}, 7, v0                 ; c8
    v_xor_b32 v{t4}, v{t3}, v{t0}
    v_lshlrev_b32 v{t4}, 4, v{t4}
    v_lshl_add_u32 v{V_X0}, v{t2}, 11, v{t4}
    v_xor_b32 v{V_X1}, 64, v{V_X0}
    v_lshlrev_b32 v{t4}, 2, v{t0}
    v_xor_b32 v{t4}, v{t4}, v{t1}
    v_lshlrev_b32 v{t4}, 4, v{t4}
    v_lshl_add_u32 v{V_W}, v{t0}, 13, v{t4}
    v_lshl_add_u32 v{V_V}, v{t0}, 8, v{t4}
    v_xor_b32 v{t4}, v{t1}, v{t0}
    v_lshlrev_b32 v{t4}, 4, v{t4}
    v_lshl_add_u32 v{V_K}, v{t0}, 8, v{t4}
    v_xor_b32 v{V_K+1}, 64, v{V_K}
    v_xor_b32 v{V_K+2}, 0x80, v{V_K}
    v_xor_b32 v{V_K+3}, 0xc0, v{V_K}
    """)
    a(f"""
    v_and_b32 v{t0}, 31, v0                ; r
    v_lshrrev_b32 v{t1}, 5, v0             ; hh
    v_lshrrev_b32 v{t2}, 1, v{t0}
    v_and_b32 v{t2}, 7, v{t2}
    v_xor_b32 v{t2}, v{t2}, v{t1}
    v_lshlrev_b32 v{t2}, 4, v{t2}
    v_lshl_add_u32 v{t2}, v{t0}, 7, v{t2}
    """)
    for c in range(4):
        a(f"v_xor_b32 v{t3}, {c*32}, v{t2}")
        a(f"v_add_u32 v{V_XA+c}, s{S_WB}, v{t3}")
    a(f"""
    v_and_b32 v{t2}, 15, v{t0}
    v_xor_b32 v{t2}, v{t2}, v{t1}
    v_lshlrev_b32 v{t2}, 4, v{t2}
    v_lshl_add_u32 v{t2}, v{t0}, 8, v{t2}
    """)
    for sidx in range(8):
        a(f"v_xor_b32 v{t3}, {sidx*32}, v{t2}")
        a(f"v_add_u32 v{V_KA+sidx}, s{S_WB}, v{t3}")
    a(f"""
    v_bfe_u32 v{t0}, v0, 4, 1              ; G
    v_bfe_u32 v{t2}, v0, 2, 2              ; rr
    v_and_b32 v{t3}, 1, v0                 ; c'&1
    v_bfe_u32 v{t4}, v0, 1, 1              ; c'>>1
    v_lshl_add_u32 v{t5}, v{t1}, 3, v{t2}
    v_lshlrev_b32 v{t5}, 8, v{t5}
    v_lshl_add_u32 v{t5}, v{t0}, 5, v{t5}
    v_lshl_add_u32 v{t5}, v{t3}, 4, v{t5}
    v_lshl_add_u32 v{t5}, v{t4}, 3, v{t5}
    v_lshl_add_u32 v{t5}, v{t2}, 6, v{t5}   ; + 64*rr  (j=0)
    v_add_u32 v{t5}, s{S_WB}, v{t5}
    """)
    for j in range(4):
        a(f"v_xor_b32 v{V_WA+j}, {j*64}, v{t5}")
    a(f"""
    v_lshl_add_u32 v{t5}, v{t1}, 2, v{t2}
    v_lshlrev_b32 v{t5}, 8, v{t5}
    v_lshl_add_u32 v{t5}, v{t3}, 5, v{t5}
    v_lshl_add_u32 v{t5}, v{t0}, 4, v{t5}
    v_lshl_add_u32 v{t5}, v{t4}, 3, v{t5}
    v_lshl_add_u32 v{t5}, v{t2}, 6, v{t5}
    v_add_u32 v{t5}, s{S_WB}, v{t5}
    """)
    for j in range(4):
        a(f"v_xor_b32 v{V_VA+j}, {j*64}, v{t5}")
    a(f"""
    v_lshlrev_b32 v{t5}, 4, v0
    v_add_u32 v{V_EW}, s{S_WB}, v{t5}
    s_xor_b32 s7, s3, 1
    s_mul_i32 s7, s7, {WREG}
    v_add_u32 v{V_ER}, s7, v{t5}
    v_and_b32 v{t0}, 31, v0
    v_lshlrev_b32 v{t0}, 13, v{t0}
    v_lshl_add_u32 v{t0}, v{t1}, 5, v{t0}
    s_lshl_b32 s7, s{S_B}, 18
    s_lshl_b32 s8, s{S_H}, 8
    s_add_u32 s7, s7, s8
    v_add_u32 v{V_OST}, s7, v{t0}
    """)

    st = Stream(a, 5)
    POLX = opt.get("pol_x", "")
    POLW = opt.get("pol_w", "")
    POLKV = opt.get("pol_kv", " nt")
    def emit_x(t):
        def f(sl):
            for i in range(8):
                base = S_XB0 if i < 4 else S_XB1
                a(f"s_add_u32 m0, s{S_WB}, {sl*SLOT + i*1024}")
                a(f"s_add_u32 s{S_T}, s{base}, {(i%4)*8*2048 + t*128}")
                a(f"buffer_load_dwordx4 v{V_X0 + (i&1)}, s[{SX}:{SX+3}], s{S_T} offen{POLX} lds")
            return 8
        return f
    def emit_w(sidx):
        def f(sl):
            for i in range(8):
                a(f"s_add_u32 m0, s{S_WB}, {sl*SLOT + i*1024}")
                a(f"s_add_u32 s{S_T}, s{S_WQB}, {(32*sidx + 4*i)*8192}")
                a(f"buffer_load_dwordx4 v{V_W}, s[{SW}:{SW+3}], s{S_T} offen{POLW} lds")
            return 8
        return f
    def emit_kv(t, isv):
        def f(sl):
            srd = SV if isv else SK
            for hf in range(2):
                a(f"s_add_u32 m0, s{S_WB}, {sl*SLOT + hf*4096}")
                a(f"s_mov_b32 s{S_T}, {t*8192 + hf*4096}")
                for i in range(4):
                    vo = V_V if isv else V_K + i
                    a(f"buffer_load_dwordx4 v{vo}, s[{srd}:{srd+3}], s{S_T} offen offset:{i*1024}{POLKV} lds")
            return 8
        return f
    for sidx in range(16):
        if sidx % 2 == 0:
            st.push(f"X{sidx//2}", emit_x(sidx // 2))
        st.push(f"W{sidx}", emit_w(sidx))
    st.push("E0", None)
    st.push("E1", None)
    for t in range(16):
        st.push(f"K{t}", emit_kv(t, False))
    for t in range(16):
        st.push(f"V{t}", emit_kv(t, True))
    st.pump()

    def qp_reads(n):
        sidx, ks = n // 2, n % 2
        fb = V_F + (n % 2) * 24
        xs = st.slot[f"X{sidx//2}"]; ws_ = st.slot[f"W{sidx}"]
        c0 = (sidx % 2) * 2 + ks
        for bi in range(2):
            a(f"ds_read_b128 v[{fb+bi*4}:{fb+bi*4+3}], v{V_XA+c0} offset:{xs*SLOT + bi*4096}")
        for j in range(4):
            for u in range(2):
                r = fb + 8 + j*4 + u*2
                a(f"ds_read_b64_tr_b16 v[{r}:{r+1}], v{V_WA+j} offset:{ws_*SLOT + (16*ks + 4*u)*256}")
    def qp_mfma(n):
        fb = V_F + (n % 2) * 24
        for j in range(4):
            for bi in range(2):
                acc = bi*64 + j*16
                c = "0" if n == 0 else f"a[{acc}:{acc+15}]"
                a(f"v_mfma_f32_32x32x16_bf16 a[{acc}:{acc+15}], v[{fb+8+j*4}:{fb+8+j*4+3}], v[{fb+bi*4}:{fb+bi*4+3}], {c}")
    st.wait("X0", "W0")
    qp_reads(0)
    for n in range(32):
        if n + 1 < 32:
            if (n + 1) % 2 == 0:
                sidx = (n + 1) // 2
                st.wait(f"X{sidx//2}", f"W{sidx}")
            qp_reads(n + 1)
            a("s_waitcnt lgkmcnt(10)")
        else:
            a("s_waitcnt lgkmcnt(0)")
        if n % 2 == 1:
            sidx = n // 2
            rel = [f"W{sidx}"]
            if sidx % 2 == 1:
                rel.append(f"X{sidx//2}")
            st.release(*rel)
        qp_mfma(n)
    e0, e1 = st.slot["E0"], st.slot["E1"]
    a("s_nop 15")
    for i in range(16):
        sl = e0 if i < 8 else e1
        a(f"ds_write_b128 v{V_EW}, a[{64+i*4}:{64+i*4+3}] offset:{sl*SLOT + (i%8)*1024}")
    a("s_waitcnt lgkmcnt(0)")
    a("s_barrier")
    for i in range(16):
        sl = e0 if i < 8 else e1
        a(f"ds_read_b128 v[{V_F+i*4}:{V_F+i*4+3}], v{V_ER} offset:{sl*SLOT + (i%8)*1024}")
    for i in range(16):
        if i % 4 == 0:
            a(f"s_waitcnt lgkmcnt({12-i})")
        for r in range(4):
            a(f"v_accvgpr_read_b32 v{T0+r}, a{i*4+r}")
        for r in range(4):
            a(f"v_add_f32 v{T0+r}, v{T0+r}, v{V_F+i*4+r}")
        a(f"v_cvt_pk_bf16_f32 v{V_Q+i*2}, v{T0}, v{T0+1}")
        a(f"v_cvt_pk_bf16_f32 v{V_Q+i*2+1}, v{T0+2}, v{T0+3}")
    a("s_barrier")
    st.release("E0", "E1")

    def post_s(t):
        sb = V_S + (t % 2) * 16
        if t == 0:
            a(f"v_max3_f32 v{V_M}, v{sb}, v{sb+1}, v{sb+2}")
            rest = list(range(3, 16))
        else:
            rest = list(range(0, 16))
        i = 0
        while i < len(rest):
            if i + 1 < len(rest):
                a(f"v_max3_f32 v{V_M}, v{V_M}, v{sb+rest[i]}, v{sb+rest[i+1]}")
                i += 2
            else:
                a(f"v_max_f32 v{V_M}, v{V_M}, v{sb+rest[i]}")
                i += 1
        for r in range(16):
            a(f"v_accvgpr_write_b32 a{t*16+r}, v{sb+r}")
    for t in range(16):
        st.wait(f"K{t}")
        sl = st.slot[f"K{t}"]
        for sidx in range(8):
            a(f"ds_read_b128 v[{V_F+sidx*4}:{V_F+sidx*4+3}], v{V_KA+sidx} offset:{sl*SLOT}")
        if t > 0:
            a("s_nop 7")
            post_s(t - 1)
        a("s_waitcnt lgkmcnt(0)")
        st.release(f"K{t}")
        sb = V_S + (t % 2) * 16
        for sidx in range(8):
            c = "0" if sidx == 0 else f"v[{sb}:{sb+15}]"
            a(f"v_mfma_f32_32x32x16_bf16 v[{sb}:{sb+15}], v[{V_F+sidx*4}:{V_F+sidx*4+3}], v[{V_Q+sidx*4}:{V_Q+sidx*4+3}], {c}")
    a("s_nop 15")
    post_s(15)
    a(f"""
    v_mov_b32 v{T0}, v{V_M}
    v_mov_b32 v{T0+1}, v{V_M}
    s_nop 1
    v_permlane32_swap_b32 v{T0}, v{T0+1}
    s_nop 1
    v_max_f32 v{V_M}, v{T0}, v{T0+1}
    v_mul_f32 v{V_MC}, s{S_C}, v{V_M}
    v_mov_b32 v{V_L}, 0
    """)
    for t in range(16):
        st.wait(f"V{t}")
        sl = st.slot[f"V{t}"]
        for sp in range(2):
            for j in range(4):
                for u in range(2):
                    r = V_F + (sp*4 + j)*4 + u*2
                    a(f"ds_read_b64_tr_b16 v[{r}:{r+1}], v{V_VA+j} offset:{sl*SLOT + (16*sp + 8*u)*256}")
        pb = V_P + (t % 2) * 8
        tb = V_S
        for r in range(16):
            a(f"v_accvgpr_read_b32 v{tb+r}, a{t*16+r}")
        for r in range(16):
            a(f"v_fma_f32 v{tb+r}, v{tb+r}, s{S_C}, -v{V_MC}")
        for r in range(16):
            a(f"v_exp_f32 v{tb+r}, v{tb+r}")
        a("s_nop 0")
        for r in range(0, 16, 2):
            a(f"v_cvt_pk_bf16_f32 v{pb+r//2}, v{tb+r}, v{tb+r+1}")
        for r in range(0, 16, 2):
            a(f"v_add_f32 v{tb+r}, v{tb+r}, v{tb+r+1}")
        for r in range(0, 16, 4):
            a(f"v_add_f32 v{tb+r}, v{tb+r}, v{tb+r+2}")
        a(f"v_add_f32 v{tb}, v{tb}, v{tb+4}")
        a(f"v_add_f32 v{tb+8}, v{tb+8}, v{tb+12}")
        a(f"v_add_f32 v{tb}, v{tb}, v{tb+8}")
        a(f"v_add_f32 v{V_L}, v{V_L}, v{tb}")
        a("s_waitcnt lgkmcnt(0)")
        st.release(f"V{t}")
        for sp in range(2):
            for j in range(4):
                ob = V_O + j*16
                c = "0" if (t == 0 and sp == 0) else f"v[{ob}:{ob+15}]"
                fr = V_F + (sp*4 + j)*4
                a(f"v_mfma_f32_32x32x16_bf16 v[{ob}:{ob+15}], v[{fr}:{fr+3}], v[{pb+sp*4}:{pb+sp*4+3}], {c}")
    a(f"""
    v_mov_b32 v{T0}, v{V_L}
    v_mov_b32 v{T0+1}, v{V_L}
    s_nop 1
    v_permlane32_swap_b32 v{T0}, v{T0+1}
    s_nop 1
    v_add_f32 v{V_L}, v{T0}, v{T0+1}
    v_rcp_f32 v{V_L}, v{V_L}
    s_nop 15
    """)
    for j in range(4):
        ob = V_O + j*16
        for r in range(16):
            a(f"v_mul_f32 v{ob+r}, v{ob+r}, v{V_L}")
        for r in range(0, 16, 2):
            a(f"v_cvt_pk_bf16_f32 v{V_F+j*8+r//2}, v{ob+r}, v{ob+r+1}")
        a(f"buffer_store_dwordx4 v[{V_F+j*8}:{V_F+j*8+3}], v{V_OST}, s[{SO}:{SO+3}], 0 offen offset:{j*64}")
        a(f"buffer_store_dwordx4 v[{V_F+j*8+4}:{V_F+j*8+7}], v{V_OST}, s[{SO}:{SO+3}], 0 offen offset:{j*64+16}")
    a.label("L_k1_end")
    a("s_endpgm")

def gen_k2(a, opt):
    kernel_header(a, "oproj_kernel")
    V_X0, V_X1, V_W = 1, 2, 3
    V_XA, V_WA = 4, 8
    V_EW, V_OST = 10, 11
    T0 = 12
    V_F = 24
    V_R = 80
    SX, SW, SO = 48, 52, 56
    S_WB, S_XB, S_WOB, S_T = 68, 69, 70, 71
    a(f"""
    s_cmp_ge_u32 s2, 256
    s_cbranch_scc1 L_k2_end
    """)
    load_ptrs(a)
    a(f"""
    v_lshrrev_b32 v{T0}, 6, v0
    v_and_b32 v0, 63, v0
    s_nop 0
    v_readfirstlane_b32 s3, v{T0}
    s_and_b32 s4, s2, 7                    ; xcd
    s_lshr_b32 s5, s2, 3                   ; i 0..31
    s_lshr_b32 s6, s4, 2                   ; branch (0 = A, 1 = B)
    s_bfe_u32 s7, s4, 0x10001
    s_lshl_b32 s7, s7, 2
    s_and_b32 s8, s5, 3
    s_add_u32 s7, s7, s8                   ; mt 0..7
    s_and_b32 s8, s4, 1
    s_lshl_b32 s8, s8, 3
    s_lshr_b32 s9, s5, 2
    s_add_u32 s8, s8, s9                   ; nt 0..15
    s_mul_i32 s{S_WB}, s3, {WREG}
    s_waitcnt lgkmcnt(0)
    s_cmp_eq_u32 s6, 0
    s_cselect_b32 s{SW}, s24, s34
    s_cselect_b32 s{SW+1}, s25, s35
    s_cselect_b32 s9, 0, 0x400000
    s_add_u32 s{SX}, s40, s9
    s_addc_u32 s{SX+1}, s41, 0
    s_mov_b32 s{SX+2}, 0x400000
    s_mov_b32 s{SX+3}, 0x00020000
    s_mov_b32 s{SW+2}, 0x800000
    s_mov_b32 s{SW+3}, 0x00020000
    s_mov_b32 s{SO}, s36
    s_mov_b32 s{SO+1}, s37
    s_mov_b32 s{SO+2}, 0x200000
    s_mov_b32 s{SO+3}, 0x00020000
    s_lshl_b32 s9, s7, 19
    s_lshl_b32 s10, s3, 11
    s_add_u32 s{S_XB}, s9, s10
    s_lshl_b32 s9, s3, 21
    s_lshl_b32 s10, s8, 7
    s_add_u32 s{S_WOB}, s9, s10
    """)
    t0, t1, t2, t3, t4, t5 = T0, T0+1, T0+2, T0+3, T0+4, T0+5
    a(f"""
    v_lshrrev_b32 v{t0}, 4, v0             ; l16
    v_lshrrev_b32 v{t2}, 3, v0             ; l8
    v_and_b32 v{t3}, 7, v0                 ; c8
    v_xor_b32 v{t4}, v{t3}, v{t0}
    v_lshlrev_b32 v{t4}, 4, v{t4}
    v_lshl_add_u32 v{V_X0}, v{t2}, 13, v{t4}
    v_xor_b32 v{V_X1}, 64, v{V_X0}
    v_and_b32 v{t4}, 1, v{t0}
    v_lshlrev_b32 v{t4}, 2, v{t4}
    v_xor_b32 v{t4}, v{t4}, v{t3}
    v_lshlrev_b32 v{t4}, 4, v{t4}
    v_lshl_add_u32 v{V_W}, v{t2}, 11, v{t4}
    v_and_b32 v{t0}, 31, v0                ; r
    v_lshrrev_b32 v{t1}, 5, v0             ; hh
    v_lshrrev_b32 v{t2}, 1, v{t0}
    v_and_b32 v{t2}, 7, v{t2}
    v_xor_b32 v{t2}, v{t2}, v{t1}
    v_lshlrev_b32 v{t2}, 4, v{t2}
    v_lshl_add_u32 v{t2}, v{t0}, 7, v{t2}
    """)
    for c in range(4):
        a(f"v_xor_b32 v{t3}, {c*32}, v{t2}")
        a(f"v_add_u32 v{V_XA+c}, s{S_WB}, v{t3}")
    a(f"""
    v_bfe_u32 v{t0}, v0, 4, 1              ; G
    v_bfe_u32 v{t2}, v0, 2, 2              ; rr
    v_and_b32 v{t3}, 1, v0                 ; c'&1
    v_bfe_u32 v{t4}, v0, 1, 1              ; c'>>1
    v_lshl_add_u32 v{t5}, v{t1}, 3, v{t2}
    v_lshlrev_b32 v{t5}, 7, v{t5}
    v_lshl_add_u32 v{t5}, v{t3}, 5, v{t5}
    v_lshl_add_u32 v{t5}, v{t0}, 4, v{t5}
    v_lshl_add_u32 v{t5}, v{t4}, 3, v{t5}
    v_lshrrev_b32 v{t2}, 1, v{t2}
    v_lshl_add_u32 v{t5}, v{t2}, 6, v{t5}
    v_add_u32 v{V_WA}, s{S_WB}, v{t5}
    v_xor_b32 v{V_WA+1}, 64, v{V_WA}
    v_lshlrev_b32 v{V_EW}, 4, v0
    v_and_b32 v{t0}, 31, v0
    v_lshlrev_b32 v{t0}, 12, v{t0}
    v_lshl_add_u32 v{t0}, v{t1}, 5, v{t0}
    s_lshl_b32 s9, s7, 18
    s_lshr_b32 s10, s3, 1
    s_lshl_b32 s10, s10, 17
    s_add_u32 s9, s9, s10
    s_lshl_b32 s10, s6, 11
    s_add_u32 s9, s9, s10
    s_lshl_b32 s10, s8, 7
    s_add_u32 s9, s9, s10
    s_and_b32 s10, s3, 1
    s_lshl_b32 s10, s10, 6
    s_add_u32 s9, s9, s10
    v_add_u32 v{V_OST}, s9, v{t0}
    """)
    st = Stream(a, 5)
    POLO = opt.get("pol_o", "")
    POLWO = opt.get("pol_wo", "")
    def emit_x(t):
        def f(sl):
            for i in range(8):
                a(f"s_add_u32 m0, s{S_WB}, {sl*SLOT + i*1024}")
                a(f"s_add_u32 s{S_T}, s{S_XB}, {i*8*8192 + t*128}")
                a(f"buffer_load_dwordx4 v{V_X0 + (i&1)}, s[{SX}:{SX+3}], s{S_T} offen{POLO} lds")
            return 8
        return f
    def emit_w(t):
        def f(sl):
            for i in range(8):
                a(f"s_add_u32 m0, s{S_WB}, {sl*SLOT + i*1024}")
                a(f"s_add_u32 s{S_T}, s{S_WOB}, {(64*t + 8*i)*2048}")
                a(f"buffer_load_dwordx4 v{V_W}, s[{SW}:{SW+3}], s{S_T} offen{POLWO} lds")
            return 8
        return f
    for t in range(16):
        st.push(f"X{t}", emit_x(t))
        st.push(f"W{t}", emit_w(t))
    st.pump()
    def reads(n):
        t, ks = n // 4, n % 4
        fb = V_F + (n % 2) * 16
        xs = st.slot[f"X{t}"]; ws_ = st.slot[f"W{t}"]
        for bi in range(2):
            a(f"ds_read_b128 v[{fb+bi*4}:{fb+bi*4+3}], v{V_XA+ks} offset:{xs*SLOT + bi*4096}")
        for j in range(2):
            for u in range(2):
                r = fb + 8 + j*4 + u*2
                a(f"ds_read_b64_tr_b16 v[{r}:{r+1}], v{V_WA+j} offset:{ws_*SLOT + (16*ks + 4*u)*128}")
    def mfma(n):
        fb = V_F + (n % 2) * 16
        for j in range(2):
            for bi in range(2):
                acc = (bi*2 + j)*16
                c = "0" if n == 0 else f"a[{acc}:{acc+15}]"
                a(f"v_mfma_f32_32x32x16_bf16 a[{acc}:{acc+15}], v[{fb+8+j*4}:{fb+8+j*4+3}], v[{fb+bi*4}:{fb+bi*4+3}], {c}")
    st.wait("X0", "W0")
    reads(0)
    N = 64
    for n in range(N):
        if n + 1 < N:
            if (n + 1) % 4 == 0:
                t = (n + 1) // 4
                st.wait(f"X{t}", f"W{t}")
            reads(n + 1)
            a("s_waitcnt lgkmcnt(6)")
        else:
            a("s_waitcnt lgkmcnt(0)")
        if n % 4 == 3:
            st.release(f"X{n//4}", f"W{n//4}")
        mfma(n)
    a("s_nop 15")
    a(f"v_add_u32 v{T0}, s{S_WB}, v{V_EW}")
    for i in range(16):
        a(f"ds_write_b128 v{T0}, a[{i*4}:{i*4+3}] offset:{i*1024}")
    a("s_waitcnt lgkmcnt(0)")
    a("s_barrier")
    a(f"s_lshl_b32 s9, s3, 12")
    a(f"v_add_u32 v{T0}, s9, v{V_EW}")
    a(f"v_add_u32 v{T0+1}, {2*WREG}, v{T0}")
    for w in range(4):
        base = T0 if w < 2 else T0 + 1
        off = (w % 2) * WREG
        for i in range(4):
            dst = V_R + i*4 if w == 0 else V_F + (w-1)*16 + i*4
            a(f"ds_read_b128 v[{dst}:{dst+3}], v{base} offset:{off + i*1024}")
    a("s_waitcnt lgkmcnt(0)")
    for w in range(3):
        for r in range(16):
            a(f"v_add_f32 v{V_R+r}, v{V_R+r}, v{V_F+w*16+r}")
    for r in range(0, 16, 2):
        a(f"v_cvt_pk_bf16_f32 v{V_F+r//2}, v{V_R+r}, v{V_R+r+1}")
    a(f"buffer_store_dwordx4 v[{V_F}:{V_F+3}], v{V_OST}, s[{SO}:{SO+3}], 0 offen")
    a(f"buffer_store_dwordx4 v[{V_F+4}:{V_F+7}], v{V_OST}, s[{SO}:{SO+3}], 0 offen offset:16")
    a.label("L_k2_end")
    a("s_endpgm")

def gen(path, opt={}):
    a = Asm()
    hdr = open("cdna_kernels/%s.s.ref" % NAME).read().split("; Override launch")[0]
    a.raw(hdr.rstrip("\n"))
    a.raw("; @launch kernel=attn_kernel grid=(256,1,1) block=(256,1,1) lds=163840")
    a.raw("; @launch kernel=oproj_kernel grid=(256,1,1) block=(256,1,1) lds=163840")
    a.raw('.amdgcn_target "amdgcn-amd-amdhsa--gfx950"')
    a.raw(".text")
    gen_k1(a, opt)
    gen_k2(a, opt)
    a.raw('.section .rodata,"a"')
    a.raw(".p2align 6")
    a.raw(kernel_desc("attn_kernel", 512, 96, 256))
    a.raw(".p2align 6")
    a.raw(kernel_desc("oproj_kernel", 192, 96, 128))
    open(path, "w").write(a.text())

if __name__ == "__main__":
    out = sys.argv[1] if len(sys.argv) > 1 else "cdna_kernels/%s.s" % NAME
    gen(out)
```
